```python
import torch

def _softmax(x, axis=-1):
    return torch.softmax(x, dim=axis)

def _gelu(x):
    return torch.nn.functional.gelu(x, approximate='tanh')

def _silu(x):
    return torch.nn.functional.silu(x)

def _sigmoid(x):
    return torch.sigmoid(x)

def _layernorm(x, axis=-1, eps=1e-05):
    m = x.mean(dim=axis, keepdim=True)
    v = x.var(dim=axis, keepdim=True, unbiased=False)
    return (x - m) / torch.sqrt(v + eps)

def _scatter_add(tgt, idx, src, axis=0):
    return tgt.clone().index_add_(axis, idx, src)

def _segment_sum(src, seg, n):
    out = torch.zeros((n,) + src.shape[1:], dtype=src.dtype)
    return out.index_add_(0, seg, src)

def _pad(x, pw):
    flat = tuple((v for pair in reversed(pw) for v in pair))
    return torch.nn.functional.pad(x, flat)
kernel_name = 'standalone__tree_speculative_verify_tree_attention_over_candidate_token_tree__sampling'

def setup_inputs():

    _w = lambda a: (lambda t: t.to(torch.bfloat16) if t.is_floating_point() else t)(torch.as_tensor(a))
    B, Hq, Hkv, T, C, D = (8, 32, 4, 32, 8192, 128)
    tree_mask = torch.zeros((B, T, T), dtype=float)
    for b in range(B):
        parent = torch.zeros(T, dtype=torch.int64)
        for i in range(1, T):
            parent[i] = int(torch.randint(0, i, (1,)).item())
        for i in range(T):
            j = i
            tree_mask[b, i, j] = 1.0
            while j > 0:
                j = parent[j]
                tree_mask[b, i, j] = 1.0
    return {'q': _w((lambda *s: torch.randn(*s, dtype=torch.bfloat16) * 0.8)(B, Hq, T, D)), 'k_cache': _w((lambda *s: torch.randn(*s, dtype=torch.bfloat16) * 0.8)(B, Hkv, C, D)), 'v_cache': _w((lambda *s: torch.randn(*s, dtype=torch.bfloat16) * 0.05)(B, Hkv, C, D)), 'k_tree': _w((lambda *s: torch.randn(*s, dtype=torch.bfloat16) * 0.8)(B, Hkv, T, D)), 'v_tree': _w((lambda *s: torch.randn(*s, dtype=torch.bfloat16) * 0.05)(B, Hkv, T, D)), 'tree_mask': _w(tree_mask)}

def reference(q, k_cache, v_cache, k_tree, v_tree, tree_mask):
    B, Hq, T, D = q.shape
    Hkv, C = (k_cache.shape[1], k_cache.shape[2])
    rep = Hq // Hkv
    kc = (lambda x, n, axis: torch.repeat_interleave(x, n, dim=axis))(k_cache, rep, axis=1)
    vc = (lambda x, n, axis: torch.repeat_interleave(x, n, dim=axis))(v_cache, rep, axis=1)
    kt = (lambda x, n, axis: torch.repeat_interleave(x, n, dim=axis))(k_tree, rep, axis=1)
    vt = (lambda x, n, axis: torch.repeat_interleave(x, n, dim=axis))(v_tree, rep, axis=1)
    k = torch.concatenate([kc, kt], axis=2)
    v = torch.concatenate([vc, vt], axis=2)
    scale = D ** (-0.5)
    scores = torch.einsum('bhqd,bhkd->bhqk', q, k) * scale
    ctx_mask = torch.ones((B, 1, T, C), dtype=scores.dtype)
    tm = tree_mask[:, None, :, :].clone()
    full_mask = torch.concatenate([ctx_mask, tm], axis=-1)
    scores = scores + (1.0 - full_mask) * -1000000000.0
    p = _softmax(scores, axis=-1)
    return torch.einsum('bhqk,bhkd->bhqd', p, v)
```

```python
import re


def vr(base, n=1):
    return "v%d" % base if n == 1 else "v[%d:%d]" % (base, base + n - 1)


def sr(base, n=1):
    return "s%d" % base if n == 1 else "s[%d:%d]" % (base, base + n - 1)


def ar(base, n=1):
    return "a%d" % base if n == 1 else "a[%d:%d]" % (base, base + n - 1)


_REG_RE = re.compile(r"\b([vsa])(\d+)\b|\b([vsa])\[(\d+):(\d+)\]|\b(vcc|m0|exec|scc)\b")


def regs_of(op):
    out = []
    for m in _REG_RE.finditer(op):
        if m.group(1):
            out.append(m.group(1) + m.group(2))
        elif m.group(3):
            for i in range(int(m.group(4)), int(m.group(5)) + 1):
                out.append(m.group(3) + str(i))
        else:
            out.append(m.group(6))
    return out


TRANS = ("v_exp_f32", "v_log_f32", "v_rcp_f32", "v_rsq_f32", "v_sqrt_f32")


class I:
    def __init__(self, text, comment=None):
        self.text = text
        self.comment = comment
        t = text.strip()
        self.label = t.endswith(":")
        self.reads = set()
        self.writes = set()
        self.kind = "other"
        self.ws = 1
        self.mfma_c = set()
        self.mfma_ab = set()
        self.store_data = set()
        if self.label or t.startswith(".") or t.startswith(";") or not t:
            self.kind = "label"
            self.ws = 0
            return
        parts = t.split(None, 1)
        op = parts[0]
        self.op = op
        rest = parts[1] if len(parts) > 1 else ""
        ops = []
        cur = ""
        depth = 0
        for ch in rest:
            if ch == "[":
                depth += 1
            elif ch == "]":
                depth -= 1
            if ch == "," and depth == 0:
                ops.append(cur.strip())
                cur = ""
            else:
                cur += ch
        if cur.strip():
            ops.append(cur.strip())
        self.ops = ops
        if op == "s_nop":
            self.kind = "nop"
            self.ws = int(ops[0], 0) + 1
        elif op.startswith("v_mfma"):
            self.kind = "mfma"
            self.writes = set(regs_of(ops[0]))
            self.mfma_ab = set(regs_of(ops[1])) | set(regs_of(ops[2]))
            self.mfma_c = set(regs_of(ops[3]))
            self.reads = self.mfma_ab | self.mfma_c
            self.passes = 8 if "32x32x16" in op else 4
        elif op.startswith("v_cmp"):
            self.kind = "valu"
            self.writes = set(regs_of(ops[0]))
            for o in ops[1:]:
                self.reads |= set(regs_of(o))
        elif op.startswith("v_permlane"):
            self.kind = "permlane"
            self.writes = set(regs_of(ops[0])) | set(regs_of(ops[1]))
            self.reads = set(self.writes)
        elif op.startswith("v_readfirstlane") or op.startswith("v_readlane"):
            self.kind = "readlane"
            self.writes = set(regs_of(ops[0]))
            for o in ops[1:]:
                self.reads |= set(regs_of(o))
        elif op.startswith("v_"):
            self.kind = "trans" if any(op.startswith(x) for x in TRANS) else "valu"
            self.writes = set(regs_of(ops[0]))
            start = 1
            if op.startswith("v_add_co") or op.startswith("v_addc_co") or op.startswith("v_sub_co"):
                self.writes |= set(regs_of(ops[1]))
                start = 2
            for o in ops[start:]:
                self.reads |= set(regs_of(o))
            if op.startswith("v_fmac") or op.startswith("v_pk_fmac"):
                self.reads |= self.writes
        elif op.startswith("ds_read") or op.startswith("ds_bpermute") or op.startswith("ds_swizzle"):
            self.kind = "ds"
            self.writes = set(regs_of(ops[0]))
            for o in ops[1:]:
                self.reads |= set(regs_of(o.split(" offset")[0]))
        elif op.startswith("ds_write"):
            self.kind = "ds"
            for o in ops:
                self.reads |= set(regs_of(o.split(" offset")[0]))
        elif op.startswith("buffer_load") or op.startswith("global_load"):
            self.kind = "vmem"
            if " lds" in t or "_lds_" in op:
                self.kind = "dma"
                for o in ops:
                    self.reads |= set(regs_of(o))
                self.reads.add("m0")
            else:
                self.writes = set(regs_of(ops[0]))
                for o in ops[1:]:
                    self.reads |= set(regs_of(o))
        elif op.startswith("buffer_store") or op.startswith("global_store") or op.startswith("buffer_atomic") or op.startswith("global_atomic"):
            self.kind = "vmem"
            for o in ops:
                self.reads |= set(regs_of(o))
            if op.startswith("buffer_store") and ("x4" in op or "x3" in op):
                self.store_data = set(regs_of(ops[0]))
            if "atomic" in op and "sc0" in t:
                self.writes = set(regs_of(ops[0]))
        elif op.startswith("buffer_"):
            self.kind = "vmem"
        elif op.startswith("s_load") or op.startswith("s_memtime") or op.startswith("s_memrealtime"):
            self.kind = "smem"
            self.writes = set(regs_of(ops[0]))
            for o in ops[1:]:
                self.reads |= set(regs_of(o))
        elif op.startswith("s_waitcnt") or op in ("s_barrier", "s_endpgm", "s_setprio", "s_sleep"):
            self.kind = "wait"
        elif op.startswith("s_cbranch") or op == "s_branch":
            self.kind = "branch"
            if "vcc" in op:
                self.reads.add("vcc")
        elif op.startswith("s_cmp"):
            self.kind = "salu"
            for o in ops:
                self.reads |= set(regs_of(o))
        elif op.startswith("s_"):
            self.kind = "salu"
            self.writes = set(regs_of(ops[0]))
            for o in ops[1:]:
                self.reads |= set(regs_of(o))
        else:
            raise ValueError("unknown instruction " + t)

    def is_valu(self):
        return self.kind in ("valu", "trans", "permlane", "readlane")

    def render(self):
        if self.kind == "label":
            return self.text
        s = "    " + self.text
        if self.comment:
            s += "    ; " + self.comment
        return s


def required_gap(p, c):
    need = 0
    vw = set(r for r in p.writes if r[0] in "va")
    sw = set(r for r in p.writes if r[0] == "s" or r == "vcc")
    if p.kind == "mfma":
        n_ab = {4: 8, 8: 12}[p.passes]
        n_ov = {4: 6, 8: 10}[p.passes]
        if c.kind == "mfma":
            if c.mfma_ab & vw:
                need = max(need, n_ab)
            if c.mfma_c & vw:
                if c.mfma_c == vw and c.passes == p.passes:
                    pass
                else:
                    need = max(need, n_ov)
            elif c.writes & vw:
                need = max(need, n_ov)
        elif c.is_valu() or c.kind in ("ds", "vmem", "dma"):
            if (c.reads | c.writes) & vw:
                need = max(need, n_ab)
        if c.is_valu() and (c.writes & p.mfma_c):
            need = max(need, {4: 3, 8: 7}[p.passes])
    if p.is_valu():
        if c.kind == "mfma" and (c.reads & vw):
            need = max(need, 2)
        if c.kind == "permlane" and (c.reads & vw):
            need = max(need, 2)
        if c.kind == "readlane" and (c.reads & vw):
            need = max(need, 1)
        if p.kind == "trans" and c.kind != "trans" and (c.is_valu() or c.kind == "mfma") and (c.reads & vw):
            need = max(need, 1)
        if p.kind == "trans" and c.kind in ("ds", "vmem") and (c.reads & vw):
            need = max(need, 1)
        if sw:
            if c.is_valu() and (c.reads & sw):
                need = max(need, 4 if c.kind == "readlane" else 2)
            if c.kind in ("vmem", "dma") and (c.reads & sw):
                need = max(need, 5)
            if c.kind in ("salu", "smem") and (c.reads & sw):
                need = max(need, 1)
        if "exec" in p.writes:
            need = max(need, 5)
    if p.kind == "salu" and "m0" in p.writes and c.kind == "dma":
        need = max(need, 1)
    if p.store_data and (c.writes & p.store_data):
        need = max(need, 2)
    return need


def fix_hazards(seq, context=()):
    out = list(context)
    n0 = len(out)
    for ins in seq:
        if ins.kind == "label":
            out.append(ins)
            continue
        dist = 0
        short = 0
        for p in reversed(out):
            if p.kind == "label":
                continue
            if dist >= 20:
                break
            need = required_gap(p, ins)
            if need > dist:
                short = max(short, need - dist)
            dist += p.ws
        while short > 0:
            k = min(short, 16)
            out.append(I("s_nop %d" % (k - 1), "hazard pad"))
            short -= k
        out.append(ins)
    return out[n0:]


def check_hazards(seq, context=()):
    fixed = fix_hazards(seq, context)
    return len(fixed) - len(seq)
```

```python
import math
import struct
import sys

from asmlib import I, vr, sr, fix_hazards

NAME = "standalone__tree_speculative_verify_tree_attention_over_candidate_token_tree__sampling"

HEADER = """; Kernarg layout for this problem (72 bytes, ptrs only, base s[0:1]):
;   offset  48: d_out     shape=(8, 32, 32, 128) dtype=bfloat16 (2 bytes/elem)
"""


def f32bits(x):
    return struct.unpack("<I", struct.pack("<f", x))[0]


def hx(x):
    return "0x%08x" % x


class Opt:
    nt = True
    fused = False
    thr = 4096.0


vO = 0
vS = [64, 80]
vP = [96, 104]
vQ = 112
vK = 144
vV = 176
vKA = 208
vVA = 216
vDK = 220
vDV = 221
vMC = 222
vL = 223
vTS = 224
vT = 226
vLane = 242
vX = 243
NVGPR = 252

sQp, sKp, sVp, sKTp, sVTp, sMp, sOp, sDp = 4, 6, 8, 10, 12, 14, 16, 18
sWp = 20
sG, sSplit, sW, sWB, sOff, sC, sThr, sT0, sT1, sT2 = 22, 23, 24, 25, 26, 27, 28, 29, 30, 31
srdK, srdV, srdQ, srdKT, srdVT, srdM, srdW, srdML, srdO = 32, 36, 40, 44, 48, 52, 56, 60, 64
sT3, sT4, sT5 = 68, 69, 70
NSGPR = 80

VBASE = 65536
UNIT = 8192
SCALE_LOG2 = (128.0 ** -0.5) * math.log2(math.e)
ML_OFF = 16 << 20


class Seq:
    def __init__(self):
        self.l = []

    def __call__(self, text, comment=None):
        self.l.append(I(text, comment))

    def ext(self, items):
        self.l.extend(items)


def srd(e, d, ptr, off_s, nbytes):
    if off_s is None:
        e("s_mov_b32 s%d, s%d" % (d, ptr))
        e("s_and_b32 s%d, s%d, 0xffff" % (d + 1, ptr + 1))
    else:
        e("s_add_u32 s%d, s%d, s%d" % (d, ptr, off_s))
        e("s_addc_u32 s%d, s%d, 0" % (d + 1, ptr + 1))
        e("s_and_b32 s%d, s%d, 0xffff" % (d + 1, d + 1))
    e("s_mov_b32 s%d, %d" % (d + 2, nbytes))
    e("s_mov_b32 s%d, 0x00020000" % (d + 3))


def dma(e, o, vaddr, srdn, soff, ldsoff, nt=True):
    e("s_add_u32 m0, s%d, %d" % (sWB, ldsoff))
    e("buffer_load_dwordx4 v%d, %s, %s offen%s lds" % (vaddr, sr(srdn, 4), soff, " nt" if (nt and o.nt) else ""))


def lk(slot, s):
    return I("ds_read_b128 %s, v%d offset:%d" % (vr(vK + 4 * s, 4), vKA + s, slot * UNIT))


def lv(slot, f, t):
    ks, db = f >> 2, f & 3
    return I("ds_read_b64_tr_b16 %s, v%d offset:%d" % (vr(vV + 4 * f + 2 * t, 2), vVA + db, slot * UNIT + ks * 4096 + t * 2048))


def qk(par, s, first_c):
    c = first_c if s == 0 else vr(vS[par], 16)
    return I("v_mfma_f32_32x32x16_bf16 %s, %s, %s, %s" % (vr(vS[par], 16), vr(vK + 4 * s, 4), vr(vQ + 4 * s, 4), c))


def pv(par, f):
    ks, db = f >> 2, f & 3
    return I("v_mfma_f32_32x32x16_bf16 %s, %s, %s, %s" % (vr(vO + 16 * db, 16), vr(vV + 4 * f, 4), vr(vP[par] + 4 * ks, 4), vr(vO + 16 * db, 16)))


def softmax_ops(par):
    S, P = vS[par], vP[par]
    F, E, A, C = [], [], [], []
    for j in range(8):
        ta, tb = vT + 2 * (j % 4), vT + 2 * (j % 4) + 1
        F.append([I("v_fma_f32 v%d, v%d, s%d, -v%d" % (ta, S + 2 * j, sC, vMC)),
                  I("v_fma_f32 v%d, v%d, s%d, -v%d" % (tb, S + 2 * j + 1, sC, vMC))])
        E.append([I("v_exp_f32 v%d, v%d" % (ta, ta)), I("v_exp_f32 v%d, v%d" % (tb, tb))])
        if j == 0:
            A.append([I("v_add_f32 v%d, v%d, v%d" % (vTS, ta, tb))])
        else:
            A.append([I("v_add_f32 v%d, v%d, v%d" % (vTS, vTS, ta)), I("v_add_f32 v%d, v%d, v%d" % (vTS, vTS, tb))])
        C.append([I("v_cvt_pk_bf16_f32 v%d, v%d, v%d" % (P + j, ta, tb))])
    out = []
    for t in range(10):
        if t < 8:
            out += F[t]
        if 0 <= t - 1 < 8:
            out += E[t - 1]
        if 0 <= t - 2 < 8:
            a = A[t - 2]
            out += [a[0]] + C[t - 2] + a[1:]
    return out


def add_lgkm_waits(seq, pending=()):
    out = []
    pend = list(pending)
    for ins in seq:
        if ins.kind == "wait" and ins.text.startswith("s_waitcnt") and "lgkmcnt(0)" in ins.text:
            pend = []
        if ins.kind not in ("label",):
            touched = ins.reads | ins.writes
            last = -1
            for idx, d in enumerate(pend):
                if d & touched:
                    last = idx
            if last >= 0:
                n = len(pend) - 1 - last
                n = min(n, 15)
                out.append(I("s_waitcnt lgkmcnt(%d)" % n))
                pend = pend[len(pend) - n:] if n else []
        out.append(ins)
        if ins.kind == "ds":
            pend.append(set(ins.writes))
    return out


def step(o, k):
    par = k & 1
    e = Seq()
    e("STEP_%d:" % k)
    e("s_waitcnt vmcnt(12) lgkmcnt(0)")
    e("s_barrier")
    mf = [pv(1 - par, f) for f in range(8)] + [qk(1 - par, s, "0") for s in range(8)]
    gaps = [[] for _ in range(16)]
    d = Seq()
    dma(d, o, vDV, srdV, "s%d" % sOff, VBASE + ((k - 1) & 7) * UNIT)
    d("s_add_u32 s%d, s%d, %d" % (sOff, sOff, UNIT))
    gaps[0] += [lk((k + 1) & 7, 0), lk((k + 1) & 7, 1)] + d.l
    d = Seq()
    dma(d, o, vDK, srdK, "s%d" % sOff, k * UNIT)
    gaps[1] += [lk((k + 1) & 7, 2), lk((k + 1) & 7, 3)] + d.l
    gaps[2] += [lk((k + 1) & 7, 4), lk((k + 1) & 7, 5)]
    gaps[3] += [lk((k + 1) & 7, 6), lk((k + 1) & 7, 7)]
    for f in range(8):
        gaps[4 + f] += [lv(k, f, 0), lv(k, f, 1)]
    sm = softmax_ops(par)
    n = len(sm)
    cuts = [0] + [round(n * (i / 15.0)) for i in range(0, 16)]
    for gi in range(16):
        lo, hi = cuts[gi], cuts[gi + 1]
        gaps[gi] = gaps[gi] + sm[lo:hi]
    for i in range(16):
        if i == 8:
            e("s_waitcnt lgkmcnt(8)")
        e.l.append(mf[i])
        e.ext(gaps[i])
    e("v_cmp_lt_f32 vcc, s%d, v%d" % (sThr, vTS))
    e("s_cbranch_vccnz RARE_%d" % k)
    e("BACK_%d:" % k)
    e("v_add_f32 v%d, v%d, v%d" % (vL, vL, vTS))
    if k == 7:
        e("s_cmp_lt_u32 s%d, %d" % (sOff, 39 * UNIT))
        e("s_cbranch_scc1 STEP_0")
    return e.l


def rare(o, k):
    par = k & 1
    S = vS[par]
    e = Seq()
    e("RARE_%d:" % k)
    e("s_nop 7")
    a, b, c = vX, vX + 1, vX + 2
    e("v_max3_f32 v%d, v%d, v%d, v%d" % (a, S, S + 1, S + 2))
    e("v_max3_f32 v%d, v%d, v%d, v%d" % (b, S + 3, S + 4, S + 5))
    for i in range(6, 16, 4):
        e("v_max3_f32 v%d, v%d, v%d, v%d" % (a, a, S + i, S + i + 1))
        if i + 3 < 16:
            e("v_max3_f32 v%d, v%d, v%d, v%d" % (b, b, S + i + 2, S + i + 3))
    e("v_max_f32 v%d, v%d, v%d" % (a, a, b))
    e("v_mov_b32 v%d, v%d" % (b, a))
    e("v_permlane32_swap_b32 v%d, v%d" % (a, b))
    e("v_max_f32 v%d, v%d, v%d" % (a, a, b))
    e("v_mul_f32 v%d, s%d, v%d" % (a, sC, a))
    e("v_max_f32 v%d, v%d, v%d" % (a, a, vMC), "new running max (log2 units)")
    e("v_sub_f32 v%d, v%d, v%d" % (b, vMC, a))
    e("v_exp_f32 v%d, v%d" % (b, b), "rescale factor")
    e("v_mov_b32 v%d, v%d" % (vMC, a))
    e("v_mul_f32 v%d, v%d, v%d" % (vL, vL, b))
    for i in range(64):
        e("v_mul_f32 v%d, v%d, v%d" % (vO + i, vO + i, b))
    e.ext(softmax_ops(par))
    e("s_branch BACK_%d" % k)
    return fix_hazards(e.l)


def prologue_common(o):
    e = Seq()
    e("s_cmp_ge_u32 s2, 256")
    e("s_cbranch_scc1 DONE")
    e("s_load_dwordx16 s[4:19], s[0:1], 0")
    e("s_load_dwordx2 s[20:21], s[0:1], 64")
    e("s_and_b32 s%d, s2, 31" % sG)
    e("s_lshr_b32 s%d, s2, 5" % sSplit)
    x0, x1, x2, x3 = vX, vX + 1, vX + 2, vX + 3
    e("v_lshrrev_b32 v%d, 6, v0" % x0)
    e("v_and_b32 v%d, 63, v0" % vLane)
    e("v_readfirstlane_b32 s%d, v%d" % (sW, x0))
    e("v_lshrrev_b32 v%d, 4, v0" % x0, "row 0..31")
    e("v_and_b32 v%d, 15, v0" % x1, "pos")
    e("v_and_b32 v%d, 15, v%d" % (x2, x0))
    e("v_xor_b32 v%d, v%d, v%d" % (x2, x2, x1))
    e("v_lshlrev_b32 v%d, 4, v%d" % (x2, x2))
    e("v_lshl_add_u32 v%d, v%d, 8, v%d" % (vDK, x0, x2))
    e("v_and_b32 v%d, 3, v%d" % (x2, x0))
    e("v_lshlrev_b32 v%d, 2, v%d" % (x2, x2))
    e("v_xor_b32 v%d, v%d, v%d" % (x2, x2, x1))
    e("v_lshlrev_b32 v%d, 4, v%d" % (x2, x2))
    e("v_lshl_add_u32 v%d, v%d, 8, v%d" % (vDV, x0, x2))
    e("s_lshl_b32 s%d, s%d, 10" % (sWB, sW))
    e("v_and_b32 v%d, 31, v%d" % (x0, vLane), "row r")
    e("v_lshrrev_b32 v%d, 5, v%d" % (x1, vLane), "half h")
    e("v_lshlrev_b32 v%d, 4, v%d" % (x2, x1))
    e("v_lshl_add_u32 v%d, v%d, 8, v%d" % (vX + 4, x0, x2))
    e("s_lshl_b32 s%d, s%d, 13" % (sT0, sW))
    e("v_add_u32 v%d, s%d, v%d" % (vX + 4, sT0, vX + 4))
    e("v_lshlrev_b32 v%d, 3, v%d" % (x2, x1))
    e("v_lshl_add_u32 v%d, v%d, 6, v%d" % (vX + 5, x0, x2))
    e("v_and_b32 v%d, 15, v%d" % (x2, x0))
    e("v_xor_b32 v%d, v%d, v%d" % (x2, x2, x1))
    e("v_lshlrev_b32 v%d, 4, v%d" % (x2, x2))
    e("v_lshl_add_u32 v%d, v%d, 8, v%d" % (vKA, x0, x2))
    for s in range(1, 8):
        e("v_xor_b32 v%d, %d, v%d" % (vKA + s, s << 5, vKA))
    e("v_bfe_u32 v%d, v%d, 2, 2" % (x0, vLane), "r")
    e("v_lshl_add_u32 v%d, v%d, 2, v%d" % (x2, x1, x0), "row = 4h + r")
    e("v_lshlrev_b32 v%d, 8, v%d" % (x2, x2))
    e("v_bfe_u32 v%d, v%d, 4, 1" % (x3, vLane), "dh")
    e("v_lshlrev_b32 v%d, 1, v%d" % (x3, x3))
    e("v_bfe_u32 v%d, v%d, 1, 1" % (x1, vLane), "c>>1")
    e("v_add_u32 v%d, v%d, v%d" % (x3, x3, x1))
    e("v_lshl_add_u32 v%d, v%d, 2, v%d" % (x3, x0, x3), "pos (db=0) = r<<2 | 2dh+(c>>1)")
    e("v_lshl_add_u32 v%d, v%d, 4, v%d" % (x2, x3, x2))
    e("v_and_b32 v%d, 1, v%d" % (x1, vLane))
    e("v_lshl_add_u32 v%d, v%d, 3, v%d" % (x2, x1, x2))
    e("v_add_u32 v%d, %d, v%d" % (vVA, VBASE, x2))
    for db in range(1, 4):
        e("v_xor_b32 v%d, %d, v%d" % (vVA + db, db << 6, vVA))
    e("s_mov_b32 s%d, %s" % (sC, hx(f32bits(SCALE_LOG2))))
    e("s_mov_b32 s%d, %s" % (sThr, hx(f32bits(o.thr))))
    e("s_lshl_b32 s%d, s%d, 21" % (sT0, sG))
    e("s_lshl_b32 s%d, s%d, 18" % (sT1, sSplit))
    e("s_add_u32 s%d, s%d, s%d" % (sT0, sT0, sT1), "K/V chunk byte offset")
    e("s_lshl_b32 s%d, s%d, 16" % (sT1, sG), "Q group offset")
    e("s_lshl_b32 s%d, s%d, 13" % (sT2, sG), "tree offset")
    e("s_lshr_b32 s%d, s%d, 2" % (sT3, sG))
    e("s_lshl_b32 s%d, s%d, 11" % (sT3, sT3), "mask offset")
    e("s_waitcnt lgkmcnt(0)")
    srd(e, srdK, sKp, sT0, 262144)
    srd(e, srdV, sVp, sT0, 262144)
    srd(e, srdQ, sQp, sT1, 65536)
    srd(e, srdKT, sKTp, sT2, 8192)
    srd(e, srdVT, sVTp, sT2, 8192)
    srd(e, srdM, sMp, sT3, 2048)
    e("s_cmp_eq_u32 s%d, 0" % sSplit)
    e("s_cbranch_scc1 PRO_T")
    return e.l


def prologue(o, tree):
    first = -1 if tree else 0
    par = first & 1
    e = Seq()
    e("PRO_T:" if tree else "PRO_N:")

    def dk(u):
        if u < 0:
            dma(e, o, vDK, srdKT, "0", (u & 7) * UNIT, nt=False)
        else:
            e("s_mov_b32 s%d, %d" % (sOff, u * UNIT))
            dma(e, o, vDK, srdK, "s%d" % sOff, (u & 7) * UNIT)

    def dv(u):
        if u < 0:
            dma(e, o, vDV, srdVT, "0", VBASE + (u & 7) * UNIT, nt=False)
        else:
            e("s_mov_b32 s%d, %d" % (sOff, u * UNIT))
            dma(e, o, vDV, srdV, "s%d" % sOff, VBASE + (u & 7) * UNIT)

    dk(first)
    for s in range(8):
        e("buffer_load_dwordx4 %s, v%d, %s, 0 offen offset:%d" % (vr(vQ + 4 * s, 4), vX + 4, sr(srdQ, 4), 32 * s))
    if tree:
        for gq in range(4):
            e("buffer_load_dwordx2 %s, v%d, %s, 0 offen offset:%d" % (vr(vT + 2 * gq, 2), vX + 5, sr(srdM, 4), 16 * gq))
    for j in range(7):
        dk(first + 1 + j)
        dv(first + j)
    e("s_mov_b32 s%d, %d" % (sOff, (first + 7) * UNIT))
    for i in range(64):
        e("v_mov_b32 v%d, 0" % (vO + i))
    for i in range(8):
        e("v_mov_b32 v%d, 0" % (vP[1 - par] + i))
    for i in range(32):
        e("v_mov_b32 v%d, 0" % (vV + i))
    e("v_mov_b32 v%d, 0" % vL)
    e("v_mov_b32 v%d, %s" % (vMC, hx(f32bits(-1e30))))
    e("s_waitcnt vmcnt(14)")
    e("s_barrier")
    for s in range(8):
        e.l.append(lk(first & 7, s))
    if tree:
        big = hx(f32bits(-1e9 * math.sqrt(128.0)))
        for i in range(16):
            src = vT + 2 * (i >> 2) + ((i & 3) >> 1)
            d = vS[par] + i
            if i & 1:
                e("v_and_b32 v%d, 0xffff0000, v%d" % (d, src))
            else:
                e("v_lshlrev_b32 v%d, 16, v%d" % (d, src))
            e("v_sub_f32 v%d, 1.0, v%d" % (d, d))
            e("v_mul_f32 v%d, %s, v%d" % (d, big, d))
    for s in range(8):
        e.l.append(qk(par, s, vr(vS[par], 16) if tree else "0"))
    e("s_nop 7")
    e("s_branch STEP_%d" % (first & 7))
    return fix_hazards(add_lgkm_waits(e.l))


def epilogue(o):
    e = Seq()
    e("s_waitcnt lgkmcnt(0)")
    for f in range(8):
        e.l.append(pv(1, f))
    e("s_lshl_b32 s%d, s%d, 3" % (sT0, sG))
    e("s_add_u32 s%d, s%d, s%d" % (sT0, sT0, sW))
    e("s_lshl_b32 s%d, s%d, 3" % (sT0, sT0))
    e("s_add_u32 s%d, s%d, s%d" % (sT0, sT0, sSplit), "(g*8+w)*8+split")
    e("s_lshl_b32 s%d, s%d, 13" % (sT1, sT0))
    srd(e, srdW, sWp, sT1, 8192)
    e("s_lshl_b32 s%d, s%d, 8" % (sT1, sT0))
    e("s_add_u32 s%d, s%d, %d" % (sT1, sT1, ML_OFF))
    srd(e, srdML, sWp, sT1, 256)
    e("s_mov_b32 s%d, 4096" % sT2)
    a, b = vX, vX + 1
    e("v_mov_b32 v%d, v%d" % (b, vL))
    e("v_lshlrev_b32 v%d, 4, v%d" % (vX + 2, vLane))
    e("v_and_b32 v%d, 31, v%d" % (vX + 3, vLane))
    e("v_permlane32_swap_b32 v%d, v%d" % (vL, b))
    e("v_lshlrev_b32 v%d, 3, v%d" % (vX + 3, vX + 3))
    e("v_add_f32 v%d, v%d, v%d" % (vL, vL, b))
    sc = " sc1" if o.fused else ""
    e("buffer_store_dwordx2 %s, v%d, %s, 0 offen%s" % (vr(vMC, 2), vX + 3, sr(srdML, 4), sc))
    pk = vQ
    for c in range(8):
        for j in range(4):
            i = 8 * c + 2 * j
            e("v_cvt_pk_bf16_f32 v%d, v%d, v%d" % (pk + 4 * c + j, vO + i, vO + i + 1))
        e("buffer_store_dwordx4 %s, v%d, %s, %s offen offset:%d%s" % (
            vr(pk + 4 * c, 4), vX + 2, sr(srdW, 4), "0" if c < 4 else "s%d" % sT2, (c & 3) * 1024, sc))
    return e.l


def combine_body(o, sGrp, sHd, sWave, vLn):
    e = Seq()
    sc = " sc1" if o.fused else ""
    e("s_lshl_b32 s%d, s%d, 3" % (sT0, sGrp))
    e("s_add_u32 s%d, s%d, s%d" % (sT0, sT0, sHd), "g*8+hd")
    e("s_lshl_b32 s%d, s%d, 16" % (sT1, sT0))
    srd(e, srdW, sWp, sT1, 65536)
    e("s_lshl_b32 s%d, s%d, 11" % (sT1, sT0))
    e("s_add_u32 s%d, s%d, %d" % (sT1, sT1, ML_OFF))
    srd(e, srdML, sWp, sT1, 2048)
    e("s_lshl_b32 s%d, s%d, 13" % (sT1, sT0))
    srd(e, srdO, sOp, sT1, 8192)
    D = 64
    ML = 100
    W = 120
    ACC = 130
    a0, a1, a2, t0, t1 = 140, 141, 142, 143, 144
    e("s_lshl_b32 s%d, s%d, 10" % (sT1, sWave))
    e("v_lshlrev_b32 v%d, 4, v%d" % (a0, vLn))
    e("v_add_u32 v%d, s%d, v%d" % (a0, sT1, a0))
    e("v_and_b32 v%d, 31, v%d" % (a1, vLn))
    e("v_lshlrev_b32 v%d, 3, v%d" % (a2, a1))
    for s in range(8):
        e("buffer_load_dwordx2 %s, v%d, %s, 0 offen offset:%d%s" % (vr(ML + 2 * s, 2), a2, sr(srdML, 4), 256 * s, sc))
    for s in range(8):
        e("s_mov_b32 s%d, %d" % (sT2, 8192 * s))
        e("buffer_load_dwordx4 %s, v%d, %s, s%d offen%s" % (vr(D + 4 * s, 4), a0, sr(srdW, 4), sT2, sc))
    e("v_lshrrev_b32 v%d, 5, v%d" % (a2, vLn))
    e("v_lshlrev_b32 v%d, 4, v%d" % (a2, a2))
    e("v_lshl_add_u32 v%d, v%d, 8, v%d" % (a1, a1, a2))
    e("s_lshl_b32 s%d, s%d, 5" % (sT1, sWave))
    e("v_add_u32 v%d, s%d, v%d" % (a1, sT1, a1))
    e("s_waitcnt vmcnt(8)")
    e("v_max3_f32 v%d, v%d, v%d, v%d" % (t0, ML, ML + 2, ML + 4))
    e("v_max3_f32 v%d, v%d, v%d, v%d" % (t0, t0, ML + 6, ML + 8))
    e("v_max3_f32 v%d, v%d, v%d, v%d" % (t0, t0, ML + 10, ML + 12))
    e("v_max_f32 v%d, v%d, v%d" % (t0, t0, ML + 14))
    for s in range(8):
        e("v_sub_f32 v%d, v%d, v%d" % (W + s, ML + 2 * s, t0))
    for s in range(8):
        e("v_exp_f32 v%d, v%d" % (W + s, W + s))
    e("v_mul_f32 v%d, v%d, v%d" % (t1, W, ML + 1))
    for s in range(1, 8):
        e("v_fmac_f32 v%d, v%d, v%d" % (t1, W + s, ML + 2 * s + 1))
    e("v_rcp_f32 v%d, v%d" % (t1, t1))
    for s in range(8):
        e("v_mul_f32 v%d, v%d, v%d" % (W + s, W + s, t1))
    for s in range(8):
        e("s_waitcnt vmcnt(%d)" % (7 - s))
        for j in range(4):
            src = D + 4 * s + j
            e("v_lshlrev_b32 v%d, 16, v%d" % (t0, src))
            e("v_and_b32 v%d, 0xffff0000, v%d" % (t1, src))
            if s == 0:
                e("v_mul_f32 v%d, v%d, v%d" % (ACC + 2 * j, W, t0))
                e("v_mul_f32 v%d, v%d, v%d" % (ACC + 2 * j + 1, W, t1))
            else:
                e("v_fmac_f32 v%d, v%d, v%d" % (ACC + 2 * j, W + s, t0))
                e("v_fmac_f32 v%d, v%d, v%d" % (ACC + 2 * j + 1, W + s, t1))
    R = 148
    for j in range(4):
        e("v_cvt_pk_bf16_f32 v%d, v%d, v%d" % (R + j, ACC + 2 * j, ACC + 2 * j + 1))
    e("v_permlane32_swap_b32 v%d, v%d" % (R, R + 2))
    e("v_permlane32_swap_b32 v%d, v%d" % (R + 1, R + 3))
    e("buffer_store_dwordx4 %s, v%d, %s, 0 offen" % (vr(R, 4), a1, sr(srdO, 4)))
    return e.l


def kd(label, nv, ns):
    return """.amdhsa_kernel %s
  .amdhsa_next_free_vgpr %d
  .amdhsa_next_free_sgpr %d
  .amdhsa_accum_offset %d
  .amdhsa_group_segment_fixed_size 0
  .amdhsa_kernarg_size 72
  .amdhsa_user_sgpr_count 2
  .amdhsa_user_sgpr_kernarg_segment_ptr 1
  .amdhsa_system_sgpr_workgroup_id_x 1
.end_amdhsa_kernel
""" % (label, nv, ns, (nv + 3) // 4 * 4)


def build(o):
    main = NAME + "_kernel"
    comb = "tree_attn_combine_kernel"
    out = [HEADER.rstrip("\n")]
    if o.fused:
        out.append("; @launch grid=(256,1,1) block=(512,1,1) lds=131072")
    else:
        out.append("; @launch kernel=%s grid=(256,1,1) block=(512,1,1) lds=131072" % main)
        out.append("; @launch kernel=%s grid=(256,1,1) block=(512,1,1) lds=0" % comb)
    out.append('.amdgcn_target "amdgcn-amd-amdhsa--gfx950"')
    out.append(".text")
    out.append(".globl %s\n.p2align 8\n.type %s,@function\n%s:" % (main, main, main))
    body = []
    body += fix_hazards(prologue_common(o))
    body += prologue(o, False)
    body += prologue(o, True)
    steps = [step(o, k) for k in range(8)]
    fixed = []
    ctx = steps[7][-24:]
    for k in range(8):
        s = fix_hazards(steps[k], ctx)
        fixed.append(s)
        ctx = s[-24:]
    assert len(fix_hazards(fixed[0], fixed[7][-24:])) == len(fixed[0])
    body.append(I(".p2align 6"))
    for s in fixed:
        body += s
    body += fix_hazards(epilogue(o), fixed[7][-24:])
    body.append(I("DONE:"))
    body.append(I("s_endpgm"))
    for k in range(8):
        body += rare(o, k)
    out += [i.render() for i in body]
    if not o.fused:
        out.append(".globl %s\n.p2align 8\n.type %s,@function\n%s:" % (comb, comb, comb))
        e = Seq()
        e("s_cmp_ge_u32 s2, 256")
        e("s_cbranch_scc1 CDONE")
        e("s_load_dwordx2 s[16:17], s[0:1], 48")
        e("s_load_dwordx2 s[20:21], s[0:1], 64")
        e("s_and_b32 s%d, s2, 31" % sG)
        e("s_lshr_b32 s%d, s2, 5" % sSplit)
        e("v_lshrrev_b32 v1, 6, v0")
        e("v_and_b32 v2, 63, v0")
        e("v_readfirstlane_b32 s%d, v1" % sW)
        e("s_waitcnt lgkmcnt(0)")
        e.ext(combine_body(o, sG, sSplit, sW, 2))
        e("CDONE:")
        e("s_endpgm")
        out += [i.render() for i in fix_hazards(e.l)]
    out.append('.section .rodata,"a"')
    out.append(".p2align 6")
    out.append(kd(main, NVGPR, NSGPR).rstrip("\n"))
    if not o.fused:
        out.append(".p2align 6")
        out.append(kd(comb, 152, NSGPR).rstrip("\n"))
    return "\n".join(out) + "\n"


if __name__ == "__main__":
    o = Opt()
    path = "cdna_kernels/%s.s" % NAME
    for a in sys.argv[1:]:
        if "=" in a:
            k, v = a.split("=", 1)
            if k == "out":
                path = v
            else:
                setattr(o, k, type(getattr(o, k))(eval(v)))
    open(path, "w").write(build(o))
    print("wrote", path)
```
